```python
import torch

def _softmax(x, axis=-1):
    return torch.softmax(x, dim=axis)
def _gelu(x):
    return torch.nn.functional.gelu(x, approximate="tanh")
def _silu(x):
    return torch.nn.functional.silu(x)
def _sigmoid(x):
    return torch.sigmoid(x)
def _layernorm(x, axis=-1, eps=1e-5):
    m = x.mean(dim=axis, keepdim=True)
    v = x.var(dim=axis, keepdim=True, unbiased=False)
    return (x - m) / torch.sqrt(v + eps)
def _scatter_add(tgt, idx, src, axis=0):
    return tgt.clone().index_add_(axis, idx, src)
def _segment_sum(src, seg, n):
    out = torch.zeros((n,) + src.shape[1:], dtype=src.dtype)
    return out.index_add_(0, seg, src)
def _pad(x, pw):
    flat = tuple(v for pair in reversed(pw) for v in pair)
    return torch.nn.functional.pad(x, flat)

kernel_name = 'interleave_layers__sliding_local_dilated__dense_activation_mish__prompt'

def setup_inputs():

    _w = (lambda a: (lambda t: t.to(torch.bfloat16) if t.is_floating_point() else t)(torch.as_tensor(a)))
    def _A_setup():
        B, S, D = 1, 2048, 512
        return {
            "x": _w((lambda *s: torch.randn(*s, dtype=torch.bfloat16) * 0.05)(B, S, D)),
            "wqkv": _w((lambda *s: torch.randn(*s, dtype=torch.bfloat16) * 0.05)(D, 3 * D)),
            "wo": _w((lambda *s: torch.randn(*s, dtype=torch.bfloat16) * 0.05)(D, D)),
        }
    _A_in = _A_setup()

    def _B_setup():
        B, S, D, F = 1, 2048, 512, 1376
        return {
            "x": _w((lambda *s: torch.randn(*s, dtype=torch.bfloat16) * 0.05)(B, S, D)),
            "w1": _w((lambda *s: torch.randn(*s, dtype=torch.bfloat16) * 0.8)(D, F) * (D ** -0.5)),
            "b1": _w((lambda *s: torch.randn(*s, dtype=torch.bfloat16) * 0.8)(F)),
            "w2": _w((lambda *s: torch.randn(*s, dtype=torch.bfloat16) * 0.8)(F, D) * (F ** -0.5)),
        }
    _B_in = _B_setup()

    return {
        "A_x": _A_in["x"],
        "A_wqkv": _A_in["wqkv"],
        "A_wo": _A_in["wo"],
        "B_x": _B_in["x"],
        "B_w1": _B_in["w1"],
        "B_b1": _B_in["b1"],
        "B_w2": _B_in["w2"],
    }

def reference(A_x, A_wqkv, A_wo, B_x, B_w1, B_b1, B_w2):
    def _A_ref(x, wqkv, wo):
        B, S, D = x.shape
        H = 32; Dh = D // H
        W, dil = 8, 2
        qkv = (lambda x, *d: x.permute(*d))((x @ wqkv).reshape(B, S, 3, H, Dh), 2, 0, 3, 1, 4)
        q, k, v = qkv[0], qkv[1], qkv[2]
        scale = Dh ** -0.5
        pos = torch.arange(S)
        off = torch.arange(W) * dil
        idx = pos[:, None] - off[None, :]
        mask = idx >= 0
        idx_c = torch.where(mask, idx, 0).reshape(-1)
        kg = k[:, :, idx_c, :].reshape(B, H, S, W, Dh)
        vg = v[:, :, idx_c, :].reshape(B, H, S, W, Dh)
        logits = torch.einsum("bhsd,bhswd->bhsw", q, kg) * scale
        logits = torch.where(mask[None, None, :, :], logits, -1e9)
        attn = _softmax(logits, axis=-1)
        o = torch.einsum("bhsw,bhswd->bhsd", attn, vg)
        return (lambda x, *d: x.permute(*d))(o, 0, 2, 1, 3).reshape(B, S, D) @ wo

    def _B_ref(x, w1, b1, w2):
        h = torch.einsum("bsd,df->bsf", x, w1) + b1
        sp = torch.log1p(torch.exp(-torch.abs(h))) + torch.where(h > 0, h, torch.zeros_like(h))
        act = h * torch.tanh(sp)
        return torch.einsum("bsf,fd->bsd", act, w2)

    x = A_x
    x = x + _A_ref(_layernorm(x, axis=-1), A_wqkv, A_wo)
    x = x + _B_ref(_layernorm(x, axis=-1), B_w1, B_b1, B_w2)
    x = x + _A_ref(_layernorm(x, axis=-1), A_wqkv, A_wo)
    x = x + _B_ref(_layernorm(x, axis=-1), B_w1, B_b1, B_w2)
    return x
```

```python
import sys, math, struct

NAME = "interleave_layers__sliding_local_dilated__dense_activation_mish__prompt"

class Cfg:
    stamps = False
    force_slow = False
    spin_limit = 400000
    defer = {1: 4, 2: 3, 3: 4, 4: 16}

cfg = Cfg()

def f2u(x):
    return struct.unpack("<I", struct.pack("<f", x))[0]

LOG2E = 1.4426950408889634
LN2 = 0.6931471805599453

NUNIT = 26
BWIN = 13 * 4096
ABASE = NUNIT * 4096
ASIZE = 51200
MISC = ABASE + ASIZE
ST_T = MISC
ST_R = MISC + 640
ST_M = MISC + 960
MODE_W = MISC + 1280
LDS_TOTAL = 163840

CS = 0xC0000
W_FLAG = 0
W_HALO = 0x1000
W_X2 = 0x8000
W_PAIR = 0x18000
PAIRSZ = 0x50000
W_O = 0
W_XA = 0x10000
W_H = 0x20000
WS_USED = 32 * CS
W_STAMP = WS_USED

S_X, S_WS, S_WQ, S_WO, S_W1, S_W2, S_OUT, S_B1, S_A = 4, 8, 12, 16, 20, 24, 28, 32, 40
S_DBG = 36
s_c, s_j, s_w, s_pair, s_cb, s_pb, s_mode, s_cprev = 44, 45, 46, 47, 48, 49, 50, 51
s_t0, s_t1, s_t2, s_t3 = 52, 53, 54, 55
s_so, s_wv, s_step, s_soh, s_steph, s_phi, s_spin, s_sc = 56, 57, 58, 59, 60, 61, 62, 63
S_ARG = 64
s_st0 = 84
s_k1, s_k2 = 86, 88
s_hb = 90

def srd(b): return "s[%d:%d]" % (b, b + 3)
def vr(b, n=1): return "v%d" % b if n == 1 else "v[%d:%d]" % (b, b + n - 1)

class Stream:
    def __init__(self): self.l = []; self.nbar = 0
    def __call__(self, s): self.l.append("    " + s)
    def label(self, s): self.l.append(s + ":")
    def comment(self, s): self.l.append("    ; " + s)
    def barrier(self): self("s_barrier"); self.nbar += 1
    def text(self): return "\n".join(self.l)

uid = [0]
def newlabel(p):
    uid[0] += 1
    return "L_%s_%d" % (p, uid[0])

class VAlloc:
    def __init__(self, start=1): self.n = start
    def get(self, n=1, align=1):
        if n >= 2 and align < 2: align = 2
        self.n = (self.n + align - 1) // align * align
        b = self.n; self.n += n
        assert self.n <= 256, "out of vgprs"
        return b

PH = {1: dict(nk=16, seg=3, achunk=10240, nslot=5),
      2: dict(nk=16, seg=1, achunk=8192, nslot=6),
      3: dict(nk=16, seg=3, achunk=8192, nslot=6),
      4: dict(nk=43, seg=1, achunk=8192, nslot=6)}
for p in PH: PH[p]['nch'] = (PH[p]['nk'] + 1) // 2
ubase = {}
_u = 0
for p in (1, 2, 3, 4):
    ubase[p] = _u; _u += PH[p]['nk'] * PH[p]['seg']
NU_REAL = _u
NU = 156
assert NU % NUNIT == 0
def unit(p, ks, s): return ubase[p] + ks * PH[p]['seg'] + s
def unit_lds(u): return (u % NUNIT) * 4096

def stamp(e, idx, vtmp):
    if not cfg.stamps: return
    e("s_memtime s[%d:%d]" % (s_st0, s_st0 + 1))
    e("s_waitcnt lgkmcnt(0)")
    e("v_writelane_b32 v%d, s%d, s%d" % (vtmp, s_st0, s_hb) if False else "s_lshl_b32 s%d, s%d, 5" % (s_st0 + 1, s_pair))
    e("s_add_u32 s%d, s%d, %d" % (s_st0 + 1, s_st0 + 1, idx))
    e("s_mov_b32 m0, s%d" % (s_st0 + 1))
    e("s_nop 0")
    e("v_writelane_b32 v%d, s%d, m0" % (vtmp, s_st0))

def stamp_flush(e, vtmp, v2):
    if not cfg.stamps: return
    e("s_lshl_b32 s%d, s2, 3" % s_t0)
    e("s_add_u32 s%d, s%d, s%d" % (s_t0, s_t0, s_w))
    e("s_lshl_b32 s%d, s%d, 8" % (s_t0, s_t0))
    e("s_add_u32 s%d, s%d, 0x%x" % (s_t0, s_t0, W_STAMP))
    e("v_and_b32 v%d, 63, v0" % v2)
    e("v_lshlrev_b32 v%d, 2, v%d" % (v2, v2))
    e("buffer_store_dword v%d, v%d, %s, s%d offen" % (vtmp, v2, srd(S_WS), s_t0))
    e("s_waitcnt vmcnt(0)")

def prologue():
    e = Stream()
    e("s_cmp_ge_u32 s2, 256")
    e("s_cbranch_scc1 L_end")
    e("s_load_dwordx16 s[%d:%d], s[0:1], 0" % (S_ARG, S_ARG + 15))
    e("s_load_dwordx4 s[%d:%d], s[0:1], 64" % (S_ARG + 16, S_ARG + 19))
    e("v_lshrrev_b32 v1, 6, v0")
    e("s_and_b32 s%d, s2, 7" % s_t0)
    e("s_lshr_b32 s%d, s2, 3" % s_t1)
    e("v_readfirstlane_b32 s%d, v1" % s_w)
    e("s_and_b32 s%d, s%d, 7" % (s_j, s_t1))
    e("s_lshr_b32 s%d, s%d, 3" % (s_t1, s_t1))
    e("s_lshl_b32 s%d, s%d, 2" % (s_t0, s_t0))
    e("s_add_u32 s%d, s%d, s%d" % (s_c, s_t0, s_t1))
    e("s_mul_i32 s%d, s%d, 0x%x" % (s_cb, s_c, CS))
    e("s_sub_u32 s%d, s%d, 1" % (s_cprev, s_c))
    e("s_max_i32 s%d, s%d, 0" % (s_cprev, s_cprev))
    e("s_mov_b32 s%d, 0" % s_pair)
    e("s_add_u32 s%d, s%d, 0x%x" % (s_pb, s_cb, W_PAIR))
    e("s_mov_b32 s%d, 0" % s_mode)
    e("s_and_b32 s%d, s%d, 1" % (s_wv, s_w))
    e("v_and_b32 v0, 63, v0")
    sizes = {S_X: 2097152, S_WS: (WS_USED + (0x100000 if cfg.stamps else 0)), S_WQ: 512 * 1536 * 2, S_WO: 512 * 512 * 2,
             S_W1: 512 * 1376 * 2, S_W2: 1376 * 512 * 2, S_OUT: 2097152, S_B1: 2752, S_A: 2097152}
    src = {S_X: 0, S_WQ: 2, S_WO: 4, S_W1: 8, S_B1: 10, S_W2: 12, S_OUT: 14, S_WS: 18, S_A: 0}
    for b in sizes:
        e("s_mov_b32 s%d, 0x%x" % (b + 2, sizes[b]))
        e("s_mov_b32 s%d, 0x20000" % (b + 3))
    e("s_waitcnt lgkmcnt(0)")
    for b in sizes:
        e("s_mov_b32 s%d, s%d" % (b, S_ARG + src[b]))
        e("s_mov_b32 s%d, s%d" % (b + 1, S_ARG + src[b] + 1))
    e("s_mov_b32 s%d, s%d" % (S_DBG, S_ARG + 16))
    e("s_mov_b32 s%d, s%d" % (S_DBG + 1, S_ARG + 17))
    e("s_cmp_ge_u32 s%d, 6" % s_w)
    e("s_cbranch_scc1 L_LB")
    e("s_cmp_ge_u32 s%d, 4" % s_w)
    e("s_cbranch_scc1 L_LA")
    return e

def a_addr_rowmajor(e, vA0, vA1, t0, t1):
    e("v_and_b32 v%d, 7, v0" % t0)
    e("v_lshrrev_b32 v%d, 4, v0" % t1)
    e("v_xor_b32 v%d, v%d, v%d" % (t1, t1, t0))
    e("v_lshlrev_b32 v%d, 4, v%d" % (t1, t1))
    e("v_and_b32 v%d, 15, v0" % t0)
    e("v_lshlrev_b32 v%d, 7, v%d" % (t0, t0))
    e("v_add_u32 v%d, v%d, v%d" % (t0, t0, t1))
    e("v_xor_b32 v%d, 64, v%d" % (t1, t0))
    e("v_add_u32 v%d, 0x%x, v%d" % (vA0, ABASE, t0))
    e("v_add_u32 v%d, 0x%x, v%d" % (vA1, ABASE, t1))

def a_addr_linear(e, vA0, vA1):
    e("v_lshlrev_b32 v%d, 4, v0" % vA0)
    e("v_add_u32 v%d, 0x%x, v%d" % (vA0, ABASE, vA0))
    e("v_add_u32 v%d, 1024, v%d" % (vA1, vA0))

def compute_stream():
    e = Stream()
    va = VAlloc(1)
    t = [va.get() for _ in range(8)]
    vStamp = va.get()
    vA0, vA1, vAl, vA24 = va.get(), va.get(), va.get(), va.get()
    vB13 = [va.get(), va.get()]
    vB24 = [[va.get(), va.get()], [va.get(), va.get()]]
    vSt13, vSt24, vOutA, vFlag, vTokT, vTokN = [va.get() for _ in range(6)]
    X = va.get(16, 4)
    CS1 = va.get(12, 4); CS3 = va.get(12, 4); BIAS = va.get(12, 4)
    ONES = va.get(4, 4)
    CM0 = va.get(4, 4); CM0F = va.get(4, 4); CM1 = va.get(4, 4); PM = va.get(4, 4)
    ACC = va.get(56, 4)
    FA = [va.get(20, 4), va.get(20, 4)]
    FB = [va.get(16, 4), va.get(16, 4)]
    e.vmax = va.n

    tok, g, r, cc = t[0], t[1], t[2], t[3]
    if cfg.stamps: e("v_mov_b32 v%d, 0" % vStamp)
    stamp(e, 0, vStamp)
    lz = newlabel("noinit")
    e("s_cmp_lg_u32 s%d, 0" % s_w)
    e("s_cbranch_scc1 %s" % lz)
    e("s_lshl_b32 s%d, s%d, 4" % (s_t0, s_j))
    e("s_lshl_b32 s%d, s%d, 3" % (s_t1, s_j))
    e("s_add_u32 s%d, s%d, 112" % (s_t1, s_t1))
    e("v_mov_b32 v%d, s%d" % (t[4], s_t0))
    e("v_mov_b32 v%d, s%d" % (t[5], s_t1))
    e("v_cmp_gt_u32 vcc, 4, v0")
    e("s_nop 1")
    e("v_cndmask_b32 v%d, v%d, v%d, vcc" % (t[4], t[5], t[4]))
    e("v_lshl_add_u32 v%d, v0, 2, v%d" % (t[4], t[4]))
    e("v_mov_b32 v%d, 0" % t[5])
    e("s_getreg_b32 s%d, hwreg(HW_REG_XCC_ID, 0, 3)" % s_t0)
    e("s_lshl_b32 s%d, s%d, 3" % (s_t0, s_t0))
    e("s_lshl_b64 s[%d:%d], 1, s%d" % (s_t2, s_t3, s_t0))
    e("s_lshl_b32 s%d, s%d, 3" % (s_t1, s_c))
    e("v_mov_b32 v%d, s%d" % (FA[0], s_t2))
    e("v_mov_b32 v%d, s%d" % (FA[0] + 1, s_t3))
    e("v_mov_b32 v%d, s%d" % (t[6], s_t1))
    e("s_mov_b64 exec, 63")
    e("buffer_store_dword v%d, v%d, %s, s%d offen sc1" % (t[5], t[4], srd(S_WS), s_cb))
    e("s_waitcnt vmcnt(0)")
    e("s_mov_b64 exec, 1")
    e("global_atomic_add_x2 v%d, v[%d:%d], s[%d:%d] sc1" % (t[6], FA[0], FA[0] + 1, S_DBG, S_DBG + 1))
    e("s_mov_b64 exec, -1")
    e.label(lz)
    e("v_and_b32 v%d, 15, v0" % tok)
    e("v_lshrrev_b32 v%d, 4, v0" % g)
    e("v_bfe_u32 v%d, v0, 2, 2" % r)
    e("v_and_b32 v%d, 3, v0" % cc)
    e("s_lshr_b32 s%d, s%d, 1" % (s_t0, s_w))
    e("s_lshl_b32 s%d, s%d, 15" % (s_t0, s_t0))
    e("s_lshl_b32 s%d, s%d, 16" % (s_t1, s_c))
    e("s_add_u32 s%d, s%d, s%d" % (s_t0, s_t0, s_t1))
    e("s_lshl_b32 s%d, s%d, 7" % (s_t1, s_j))
    e("s_add_u32 s%d, s%d, s%d" % (s_t0, s_t0, s_t1))
    e("s_lshl_b32 s%d, s%d, 6" % (s_t1, s_wv))
    e("s_add_u32 s%d, s%d, s%d" % (s_t0, s_t0, s_t1))
    e("v_lshlrev_b32 v%d, 10, v%d" % (t[4], tok))
    e("v_add_u32 v%d, s%d, v%d" % (t[4], s_t0, t[4]))
    e("v_lshl_add_u32 v%d, v%d, 3, v%d" % (t[5], g, t[4]))
    e("s_movk_i32 s%d, 0x4000" % s_t1)
    for i in range(2):
        for tp in range(2):
            e("buffer_load_dwordx2 v[%d:%d], v%d, %s, %s offen offset:%d" %
              (FA[1] + 4 * i + 2 * tp, FA[1] + 4 * i + 2 * tp + 1, t[5], srd(S_X), ("s%d" % s_t1) if i else "0", 32 * tp))
    e("v_and_b32 v%d, 1, v%d" % (t[6], g))
    e("v_lshrrev_b32 v%d, 1, v%d" % (t[7], g))
    e("v_lshl_add_u32 v%d, v%d, 1, v%d" % (t[5], t[6], t[7]))
    e("v_lshl_add_u32 v%d, v%d, 4, v%d" % (vOutA, t[5], t[4]))
    e("s_lshl_b32 s%d, s%d, 13" % (s_t0, s_j))
    e("s_lshr_b32 s%d, s%d, 1" % (s_t1, s_w))
    e("s_lshl_b32 s%d, s%d, 12" % (s_t2, s_t1))
    e("s_add_u32 s%d, s%d, s%d" % (s_t0, s_t0, s_t2))
    e("s_lshl_b32 s%d, s%d, 10" % (s_t3, s_wv))
    e("s_add_u32 s%d, s%d, s%d" % (s_t0, s_t0, s_t3))
    e("v_lshlrev_b32 v%d, 8, v%d" % (t[5], t[5]))
    e("v_lshl_add_u32 v%d, v%d, 4, v%d" % (t[5], tok, t[5]))
    e("v_add_u32 v%d, s%d, v%d" % (vSt24, s_t0, t[5]))
    e("v_lshlrev_b32 v%d, 4, v0" % vAl)
    e("v_add_u32 v%d, 0x%x, v%d" % (vAl, ABASE, vAl))
    e("v_add_u32 v%d, s%d, v%d" % (vA24, s_t2, vAl))
    e("s_lshl_b32 s%d, s%d, 10" % (s_t0, s_t1))
    e("s_lshl_b32 s%d, s%d, 9" % (s_t3, s_wv))
    e("s_add_u32 s%d, s%d, s%d" % (s_t0, s_t0, s_t3))
    e("v_lshlrev_b32 v%d, 11, v%d" % (t[5], t[6]))
    e("v_lshl_add_u32 v%d, v%d, 8, v%d" % (t[5], t[7], t[5]))
    e("v_lshl_add_u32 v%d, v%d, 4, v%d" % (t[5], tok, t[5]))
    e("v_add_u32 v%d, s%d, v%d" % (vSt13, s_t0, t[5]))
    e("s_mul_i32 s%d, s%d, 384" % (s_t0, s_j))
    e("s_lshl_b32 s%d, s%d, 5" % (s_t3, s_w))
    e("s_add_u32 s%d, s%d, s%d" % (s_t0, s_t0, s_t3))
    e("v_lshlrev_b32 v%d, 3, v%d" % (t[5], g))
    e("v_add_u32 v%d, s%d, v%d" % (t[5], s_t0, t[5]))
    for s in range(3):
        e("buffer_load_dwordx2 v[%d:%d], v%d, %s, 0 offen offset:%d" % (FA[1] + 8 + 2 * s, FA[1] + 9 + 2 * s, t[5], srd(S_B1), 128 * s))
    e("v_lshrrev_b32 v%d, 1, v%d" % (t[5], r))
    e("v_lshl_add_u32 v%d, v%d, 1, v%d" % (t[5], t[6], t[5]))
    e("v_lshlrev_b32 v%d, 9, v%d" % (t[4], g))
    e("v_lshl_add_u32 v%d, v%d, 7, v%d" % (t[4], r, t[4]))
    e("v_lshl_add_u32 v%d, v%d, 3, v%d" % (t[4], cc, t[4]))
    e("v_xor_b32 v%d, s%d, v%d" % (t[7], s_w, t[5]))
    e("v_lshl_add_u32 v%d, v%d, 5, v%d" % (vB13[0], t[7], t[4]))
    e("v_add_u32 v%d, 0x%x, v%d" % (vB13[1], BWIN, vB13[0]))
    e("s_lshl_b32 s%d, s%d, 1" % (s_t0, s_wv))
    for tp in range(2):
        if tp: e("s_add_u32 s%d, s%d, 1" % (s_t0, s_t0))
        e("v_xor_b32 v%d, s%d, v%d" % (t[7], s_t0, t[5]))
        e("v_lshl_add_u32 v%d, v%d, 5, v%d" % (vB24[tp][0], t[7], t[4]))
        e("v_add_u32 v%d, 0x%x, v%d" % (vB24[tp][1], BWIN, vB24[tp][0]))
    e("v_lshlrev_b32 v%d, 3, v%d" % (vTokT, tok))
    e("v_add_u32 v%d, 0x%x, v%d" % (vTokT, ST_T, vTokT))
    e("v_lshlrev_b32 v%d, 4, v%d" % (vTokN, g))
    e("v_add_u32 v%d, 0x%x, v%d" % (vTokN, ST_R, vTokN))
    e("s_lshl_b32 s%d, s%d, 2" % (s_t0, s_j))
    e("s_add_u32 s%d, s%d, s%d" % (s_t0, s_t0, s_w))
    e("s_lshl_b32 s%d, s%d, 2" % (s_t0, s_t0))
    e("v_mov_b32 v%d, s%d" % (vFlag, s_t0))
    for i in range(4): e("v_mov_b32 v%d, 0x3f803f80" % (ONES + i))
    NEG = f2u(-1.0e30)
    e("s_mov_b32 s%d, 0x%x" % (s_t3, NEG))
    e("v_lshlrev_b32 v%d, 2, v%d" % (t[4], g))
    e("v_sub_u32 v%d, v%d, v%d" % (t[4], tok, t[4]))
    e("v_mov_b32 v%d, s%d" % (t[7], s_t3))
    for q in range(4): e("v_mov_b32 v%d, 0" % (PM + q))
    for rr in range(4):
        e("v_subrev_u32 v%d, %d, v%d" % (t[5], rr, t[4]))
        e("v_and_b32 v%d, 0x80000001, v%d" % (t[5], t[5]))
        e("v_mov_b32 v%d, 0x%x" % (t[6], 0xffff0000 if rr & 1 else 0x0000ffff))
        e("v_cmp_eq_u32 vcc, 0, v%d" % t[5])
        e("s_nop 1")
        e("v_cndmask_b32 v%d, v%d, 0, vcc" % (CM1 + rr, t[7]) if False else "v_cndmask_b32_e64 v%d, v%d, 0, vcc" % (CM1 + rr, t[7]))
        e("v_cndmask_b32 v%d, v%d, v%d, vcc" % (PM + 2 + rr // 2, PM + 2 + rr // 2, t[6]))
        e("v_cmp_eq_u32 vcc, 0x80000000, v%d" % t[5])
        e("s_nop 1")
        e("v_cndmask_b32_e64 v%d, v%d, 0, vcc" % (CM0 + rr, t[7]))
        e("v_cndmask_b32 v%d, v%d, v%d, vcc" % (PM + rr // 2, PM + rr // 2, t[6]))
    e("s_cmp_eq_u32 s%d, 0" % s_c)
    e("s_cselect_b64 vcc, -1, 0")
    for rr in range(4):
        e("v_cndmask_b32 v%d, v%d, v%d, vcc" % (CM0F + rr, CM0 + rr, t[7]))
    a_addr_rowmajor(e, vA0, vA1, t[4], t[5])
    e("s_waitcnt vmcnt(0)")
    for q in range(8):
        e("v_lshlrev_b32 v%d, 16, v%d" % (X + 2 * q, FA[1] + q))
        e("v_and_b32 v%d, 0xffff0000, v%d" % (X + 2 * q + 1, FA[1] + q))
    e("s_mov_b32 s%d, 0x%x" % (s_t0, f2u(LOG2E)))
    for q in range(6):
        e("v_lshlrev_b32 v%d, 16, v%d" % (BIAS + 2 * q, FA[1] + 8 + q))
        e("v_and_b32 v%d, 0xffff0000, v%d" % (BIAS + 2 * q + 1, FA[1] + 8 + q))
    for q in range(12):
        e("v_mul_f32 v%d, s%d, v%d" % (BIAS + q, s_t0, BIAS + q))
    e("s_mov_b32 s%d, 0x%x" % (s_k1, f2u(-2 * LN2)))
    e("s_mov_b32 s%d, 0x%x" % (s_k1 + 1, f2u(-2 * LN2)))
    e("s_mov_b32 s%d, 0x%x" % (s_k2, f2u(0.25 * LOG2E)))
    e("s_mov_b32 s%d, 0x%x" % (s_k2 + 1, f2u(0.25 * LOG2E)))

    e.label("L_C_loop")

    def bread(dst, vB, u, hh):
        off = unit_lds(u)
        w = 1 if off >= BWIN else 0
        e("ds_read_b64_tr_b16 v[%d:%d], v%d offset:%d" % (dst + 2 * hh, dst + 2 * hh + 1, vB[w], off - w * BWIN + 2048 * hh))

    def mfma(d, a, b, c):
        cs = "0" if c is None else vr(c, 4)
        return "v_mfma_f32_16x16x32_bf16 %s, %s, %s, %s" % (vr(d, 4), vr(a, 4), vr(b, 4), cs)

    def interleave(mf, rd):
        i = 0
        for m in mf:
            e(m)
            for _ in range(2):
                if i < len(rd): rd[i](); i += 1
        while i < len(rd): rd[i](); i += 1

    def publish(stores, halo=None):
        e("s_add_u32 s%d, s%d, 1" % (s_phi, s_phi))
        ls, lj = newlabel("slow"), newlabel("join")
        e("v_mov_b32 v%d, s%d" % (t[0], s_phi))
        e("s_cmp_eq_u32 s%d, 0" % s_mode)
        e("s_cbranch_scc1 %s" % ls)
        for variant in ("", " sc1"):
            for st in stores: st(variant)
            e("s_waitcnt vmcnt(0)")
            e("s_mov_b64 exec, 1")
            e("buffer_store_dword v%d, v%d, %s, s%d offen%s" % (t[0], vFlag, srd(S_WS), s_cb, variant))
            e("s_mov_b64 exec, -1")
            if variant == "":
                e("s_branch %s" % lj)
                e.label(ls)
        e.label(lj)

    def main13(p):
        na = 5 if p == 1 else 4
        CSx = CS1 if p == 1 else CS3
        ph = PH[p]
        def reads(ks):
            buf = ks & 1
            ch = ks // 2; kk = ks & 1
            slot = (ch % ph['nslot']) * ph['achunk']
            l = []
            for s in range(3):
                for hh in range(2):
                    l.append(lambda s=s, hh=hh: bread(FB[buf] + 4 * s, vB13, unit(p, ks, s), hh))
            for a in range(na):
                if p == 1:
                    l.append(lambda a=a: e("ds_read_b128 %s, v%d offset:%d" % (vr(FA[buf] + 4 * a, 4), (vA1 if kk else vA0), slot + 2048 * a)))
                else:
                    l.append(lambda a=a: e("ds_read_b128 %s, v%d offset:%d" % (vr(FA[buf] + 4 * a, 4), vAl, slot + 2048 * a + 1024 * kk)))
            return l
        e.barrier()
        stamp(e, 4 * (p - 1) + 1, vStamp)
        for f in reads(0): f()
        e("s_waitcnt lgkmcnt(0)")
        for ks in range(16):
            buf = ks & 1
            rd = []
            if ks + 1 < 16:
                if (ks + 1) % 2 == 0: e.barrier()
                rd = reads(ks + 1)
            mf = []
            first = (ks == 0)
            if p == 1:
                for a in range(5):
                    if a >= 1:
                        d = ACC + 4 * (a - 1); mf.append(mfma(d, FB[buf], FA[buf] + 4 * a, None if first else d))
                    d = ACC + 16 + 4 * a; mf.append(mfma(d, FB[buf] + 4, FA[buf] + 4 * a, None if first else d))
                    d = ACC + 36 + 4 * a; mf.append(mfma(d, FA[buf] + 4 * a, FB[buf] + 8, None if first else d))
            else:
                for a in range(4):
                    for s in range(3):
                        d = ACC + 16 * s + 4 * a; mf.append(mfma(d, FB[buf] + 4 * s, FA[buf] + 4 * a, None if first else d))
            interleave(mf, rd)
            lk = newlabel("nocs")
            e("s_cmp_lg_u32 s%d, 0" % s_pair)
            e("s_cbranch_scc1 %s" % lk)
            for s in range(3):
                d = CSx + 4 * s
                if p == 1 and s == 2: e(mfma(d, ONES, FB[buf] + 8, None if first else d))
                else: e(mfma(d, FB[buf] + 4 * s, ONES, None if first else d))
            e.label(lk)
            if ks + 1 < 16: e("s_waitcnt lgkmcnt(0)")
        e.barrier()
        stamp(e, 4 * (p - 1) + 2, vStamp)

    def main24(p):
        ph = PH[p]
        nch = ph['nch']
        def nkk(ch): return min(2, ph['nk'] - 2 * ch)
        def reads(ch):
            buf = ch & 1
            slot = (ch % ph['nslot']) * ph['achunk']
            l = []
            for kk in range(nkk(ch)):
                for tp in range(2):
                    for hh in range(2):
                        l.append(lambda kk=kk, tp=tp, hh=hh: bread(FB[buf] + 8 * kk + 4 * tp, vB24[tp], unit(p, 2 * ch + kk, 0), hh))
                for i in range(2):
                    l.append(lambda kk=kk, i=i: e("ds_read_b128 %s, v%d offset:%d" % (vr(FA[buf] + 8 * kk + 4 * i, 4), vA24, slot + 2048 * i + 1024 * kk)))
            return l
        e.barrier()
        stamp(e, 4 * (p - 1) + 1, vStamp)
        for f in reads(0): f()
        e("s_waitcnt lgkmcnt(0)")
        for ch in range(nch):
            buf = ch & 1
            e.barrier()
            rd = reads(ch + 1) if ch + 1 < nch else []
            mf = []
            for kk in range(nkk(ch)):
                for i in range(2):
                    for tp in range(2):
                        d = X + 8 * i + 4 * tp
                        mf.append(mfma(d, FB[buf] + 8 * kk + 4 * tp, FA[buf] + 8 * kk + 4 * i, d))
            interleave(mf, rd)
            if ch + 1 < nch: e("s_waitcnt lgkmcnt(0)")
        stamp(e, 4 * (p - 1) + 2, vStamp)

    def pk(op, d, a, b, c=None, mods=""):
        if c is None: e("%s %s, %s, %s %s" % (op, vr(d, 2), a, b, mods))
        else: e("%s %s, %s, %s, %s %s" % (op, vr(d, 2), a, b, c, mods))

    def epi1():
        STT = FA[0]
        STQ = FA[0] + 10
        RN = FA[1]
        MN = FB[0]
        assert FB[1] == FB[0] + 16
        TMP = FB[1] + 4
        lm = newlabel("nomode")
        for a in range(5):
            e("ds_read_b64 %s, v%d offset:%d" % (vr(STT + 2 * a, 2), vTokT, 128 * a))
        for a in range(5):
            e("ds_read_b128 %s, v%d offset:%d" % (vr(RN + 4 * a, 4), vTokN, 64 * a))
            e("ds_read_b128 %s, v%d offset:%d" % (vr(MN + 4 * a, 4), vTokN, 64 * a + (ST_M - ST_R)))
        if not cfg.force_slow:
            e("v_mov_b32 v%d, 0x%x" % (t[1], MODE_W))
            e("ds_read_b32 v%d, v%d" % (t[1], t[1]))
        e("s_waitcnt lgkmcnt(0)")
        if not cfg.force_slow:
            e("v_readfirstlane_b32 s%d, v%d" % (s_mode, t[1]))
        for a in range(1, 5):
            pk("v_pk_mul_f32", STQ + 2 * (a - 1), vr(STT + 2 * a, 2), "s[%d:%d]" % (s_k2, s_k2 + 1))
        def normT(acc, cs, st):
            for h in range(2):
                pk("v_pk_mul_f32", TMP + 2 * h, vr(cs + 2 * h, 2), vr(st, 2), mods="op_sel:[0,1] op_sel_hi:[1,1]")
            for h in range(2):
                pk("v_pk_fma_f32", acc + 2 * h, vr(acc + 2 * h, 2), vr(st, 2), vr(TMP + 2 * h, 2), mods="op_sel_hi:[1,0,1] neg_lo:[0,0,1] neg_hi:[0,0,1]")
        for a in range(5):
            acc = ACC + 16 + 4 * a
            normT(acc, CS1 + 4, STT + 2 * a)
            e("v_cvt_pk_bf16_f32 v%d, v%d, v%d" % (acc, acc, acc + 1))
            e("v_cvt_pk_bf16_f32 v%d, v%d, v%d" % (acc + 1, acc + 2, acc + 3))
        for a in range(4):
            acc = ACC + 4 * a
            normT(acc, CS1, STQ + 2 * a)
            e("v_cvt_pk_bf16_f32 v%d, v%d, v%d" % (acc, acc, acc + 1))
            e("v_cvt_pk_bf16_f32 v%d, v%d, v%d" % (acc + 1, acc + 2, acc + 3))
        VP = FA[0]
        for a in range(5):
            acc = ACC + 36 + 4 * a
            for h in range(2):
                pk("v_pk_mul_f32", TMP + 2 * h, vr(MN + 4 * a + 2 * h, 2), vr(CS1 + 8, 2))
            for h in range(2):
                pk("v_pk_fma_f32", acc + 2 * h, vr(acc + 2 * h, 2), vr(RN + 4 * a + 2 * h, 2), vr(TMP + 2 * h, 2), mods="neg_lo:[0,0,1] neg_hi:[0,0,1]")
            e("v_cvt_pk_bf16_f32 v%d, v%d, v%d" % (VP + 2 * a, acc, acc + 1))
            e("v_cvt_pk_bf16_f32 v%d, v%d, v%d" % (VP + 2 * a + 1, acc + 2, acc + 3))
        S = FB[0]
        for m in range(4):
            q = ACC + 4 * m
            e("v_mfma_f32_16x16x16_bf16 %s, %s, %s, %s" % (vr(S + 8 * m, 4), vr(ACC + 16 + 4 * m, 2), vr(q, 2), vr(CM0F if m == 0 else CM0, 4)))
            e("v_mfma_f32_16x16x16_bf16 %s, %s, %s, %s" % (vr(S + 8 * m + 4, 4), vr(ACC + 16 + 4 * (m + 1), 2), vr(q, 2), vr(CM1, 4)))
        e("s_nop 7")
        XV = FA[1]
        MX = FA[1] + 8
        for m in range(4):
            s0 = S + 8 * m
            e("v_max3_f32 v%d, v%d, v%d, v%d" % (XV + 2 * m, s0, s0 + 1, s0 + 4))
            e("v_max3_f32 v%d, v%d, v%d, v%d" % (XV + 2 * m + 1, s0 + 2, s0 + 3, s0 + 6))
            e("v_max_f32 v%d, v%d, v%d" % (XV + 2 * m, XV + 2 * m, s0 + 5))
            e("v_max_f32 v%d, v%d, v%d" % (XV + 2 * m + 1, XV + 2 * m + 1, s0 + 7))
        for m in range(4):
            e("v_max_f32 v%d, v%d, v%d" % (MX + m, XV + 2 * m, XV + 2 * m + 1))
        e("s_nop 1")
        e("v_permlane32_swap_b32 v%d, v%d" % (MX, MX + 1))
        e("v_permlane32_swap_b32 v%d, v%d" % (MX + 2, MX + 3))
        e("s_nop 1")
        e("v_max_f32 v%d, v%d, v%d" % (MX, MX, MX + 1))
        e("v_max_f32 v%d, v%d, v%d" % (MX + 2, MX + 2, MX + 3))
        e("s_nop 1")
        e("v_permlane16_swap_b32 v%d, v%d" % (MX, MX + 2))
        e("s_nop 1")
        e("v_max_f32 v%d, v%d, v%d" % (MX, MX, MX + 2))
        e("v_mov_b32 v%d, v%d" % (MX + 2, MX))
        e("s_nop 1")
        e("v_permlane16_swap_b32 v%d, v%d" % (MX, MX + 2))
        e("s_nop 1")
        e("v_mov_b32 v%d, v%d" % (MX + 1, MX))
        e("v_mov_b32 v%d, v%d" % (MX + 3, MX + 2))
        e("s_nop 1")
        e("v_permlane32_swap_b32 v%d, v%d" % (MX, MX + 1))
        e("v_permlane32_swap_b32 v%d, v%d" % (MX + 2, MX + 3))
        e("s_nop 1")
        for m in range(4):
            for q in range(2):
                e("v_sub_f32 v%d, v%d, v%d" % (XV + 2 * m + q, XV + 2 * m + q, MX + m))
        for q in range(8): e("v_exp_f32 v%d, v%d" % (XV + q, XV + q))
        e("s_nop 0")
        for q in range(8): e("v_cvt_pk_bf16_f32 v%d, v%d, v%d" % (XV + q, XV + q, XV + q))
        P = FB[0]
        for m in range(4):
            for hb in range(2):
                for q in range(2):
                    e("v_and_b32 v%d, v%d, v%d" % (P + 4 * m + 2 * hb + q, PM + 2 * hb + q, XV + 2 * m + q))
        e("s_nop 1")
        O = ACC; L = ACC + 16
        for m in range(4):
            e(mfma(L + 4 * m, ONES, P + 4 * m, None))
            e(mfma(O + 4 * m, VP + 2 * m, P + 4 * m, None))
        e("s_nop 7")
        for m in range(4): e("v_rcp_f32 v%d, v%d" % (L + 4 * m, L + 4 * m))
        e("s_nop 0")
        OP = FB[1]
        for m in range(4):
            for h in range(2):
                pk("v_pk_mul_f32", O + 4 * m + 2 * h, vr(O + 4 * m + 2 * h, 2), vr(L + 4 * m, 2), mods="op_sel_hi:[1,0]")
        for m in range(4):
            e("v_cvt_pk_bf16_f32 v%d, v%d, v%d" % (OP + 2 * m, O + 4 * m, O + 4 * m + 1))
            e("v_cvt_pk_bf16_f32 v%d, v%d, v%d" % (OP + 2 * m + 1, O + 4 * m + 2, O + 4 * m + 3))
        e("s_nop 1")
        for pp in range(2):
            e("v_permlane16_swap_b32 v%d, v%d" % (OP + 4 * pp, OP + 4 * pp + 2))
            e("v_permlane16_swap_b32 v%d, v%d" % (OP + 4 * pp + 1, OP + 4 * pp + 3))
        e("s_lshl_b32 s%d, s%d, 13" % (s_so, s_j))
        e("s_add_u32 s%d, s%d, s%d" % (s_so, s_so, s_pb))
        if W_O: e("s_add_u32 s%d, s%d, 0x%x" % (s_so, s_so, W_O))
        e("s_add_u32 s%d, s%d, 4096" % (s_t0, s_so))
        publish([lambda v, pp=pp: e("buffer_store_dwordx4 %s, v%d, %s, s%d offen%s" % (vr(OP + 4 * pp, 4), vSt13, srd(S_WS), s_t0 if pp else s_so, v)) for pp in range(2)])

    def epi3():
        STT = FA[0]
        for a in range(4):
            e("ds_read_b64 %s, v%d offset:%d" % (vr(STT + 2 * a, 2), vTokT, 128 * a))
        LN = FA[0] + 8
        e("v_mov_b32 v%d, 0x%x" % (LN, f2u(LN2)))
        e("v_mov_b32 v%d, 0x%x" % (LN + 1, f2u(LN2)))
        e("s_mul_i32 s%d, s%d, 0x6000" % (s_so, s_j))
        e("s_add_u32 s%d, s%d, s%d" % (s_so, s_so, s_pb))
        e("s_add_u32 s%d, s%d, 0x%x" % (s_so, s_so, W_H))
        e("s_waitcnt lgkmcnt(0)")
        HP = FB[0]
        U = FA[1]
        for s in range(3):
            A = ACC + 16 * s
            for a in range(4):
                for h in range(2):
                    pk("v_pk_fma_f32", U + 4 * a + 2 * h, vr(CS3 + 4 * s + 2 * h, 2), vr(STT + 2 * a, 2), vr(BIAS + 4 * s + 2 * h, 2),
                       mods="op_sel:[0,1,0] op_sel_hi:[1,1,1] neg_lo:[1,0,0] neg_hi:[1,0,0]")
            for a in range(4):
                for h in range(2):
                    q = 4 * a + 2 * h
                    pk("v_pk_fma_f32", A + q, vr(A + q, 2), vr(STT + 2 * a, 2), vr(U + q, 2), mods="op_sel_hi:[1,0,1]")
            for q in range(16): e("v_exp_f32 v%d, v%d" % (U + q, A + q))
            for q in range(0, 16, 2): pk("v_pk_add_f32", U + q, vr(U + q, 2), "1.0", mods="op_sel_hi:[1,0]")
            for q in range(0, 16, 2): pk("v_pk_fma_f32", U + q, vr(U + q, 2), vr(U + q, 2), "1.0", mods="op_sel_hi:[1,1,0]")
            for q in range(16): e("v_rcp_f32 v%d, v%d" % (U + q, U + q))
            for q in range(0, 16, 2): pk("v_pk_fma_f32", U + q, vr(U + q, 2), "s[%d:%d]" % (s_k1, s_k1 + 1), vr(LN, 2))
            for q in range(0, 16, 2): pk("v_pk_mul_f32", A + q, vr(A + q, 2), vr(U + q, 2))
            for q in range(0, 16, 2): e("v_cvt_pk_bf16_f32 v%d, v%d, v%d" % (HP + 8 * s + q // 2, A + q, A + q + 1))
            e("s_nop 1")
            for pp in range(2):
                b = HP + 8 * s + 4 * pp
                e("v_permlane16_swap_b32 v%d, v%d" % (b, b + 2))
                e("v_permlane16_swap_b32 v%d, v%d" % (b + 1, b + 3))
        def st(v, i):
            e("s_add_u32 s%d, s%d, %d" % (s_t0, s_so, 4096 * i))
            e("buffer_store_dwordx4 %s, v%d, %s, s%d offen%s" % (vr(HP + 4 * i, 4), vSt13, srd(S_WS), s_t0, v))
        publish([lambda v, i=i: st(v, i) for i in range(6)])

    def epi24(p):
        XP = FA[0]
        e("s_nop 7")
        for q in range(8):
            e("v_cvt_pk_bf16_f32 v%d, v%d, v%d" % (XP + q, X + 2 * q, X + 2 * q + 1))
        e("s_nop 1")
        for i in range(2):
            e("v_permlane16_swap_b32 v%d, v%d" % (XP + 4 * i, XP + 4 * i + 2))
            e("v_permlane16_swap_b32 v%d, v%d" % (XP + 4 * i + 1, XP + 4 * i + 3))
        if p == 4:
            e("s_cmp_lg_u32 s%d, 0" % s_pair)
            e("s_cbranch_scc1 L_C_final")
            e("s_add_u32 s%d, s%d, 0x%x" % (s_so, s_cb, W_X2))
        else:
            e("s_add_u32 s%d, s%d, 0x%x" % (s_so, s_pb, W_XA))
        publish([lambda v, i=i: e("buffer_store_dwordx4 %s, v%d, %s, s%d offen offset:%d%s" % (vr(XP + 4 * i, 4), vSt24, srd(S_WS), s_so, 2048 * i, v)) for i in range(2)])
        if p == 4:
            lh = newlabel("nohalo")
            e("s_cmp_lt_u32 s%d, 2" % s_w)
            e("s_cbranch_scc1 %s" % lh)
            e("v_and_b32 v%d, 2047, v%d" % (t[1], vSt24))
            e("s_lshl_b32 s%d, s%d, 11" % (s_t0, s_j))
            e("s_add_u32 s%d, s%d, s%d" % (s_t0, s_t0, s_cb))
            e("s_add_u32 s%d, s%d, 0x%x" % (s_t0, s_t0, W_HALO))
            e("buffer_store_dwordx4 %s, v%d, %s, s%d offen sc1" % (vr(XP + 4, 4), t[1], srd(S_WS), s_t0))
            e("s_lshl_b32 s%d, s%d, 1" % (s_t0, s_j))
            e("s_add_u32 s%d, s%d, s%d" % (s_t0, s_t0, s_wv))
            e("s_lshl_b32 s%d, s%d, 2" % (s_t0, s_t0))
            e("v_mov_b32 v%d, s%d" % (t[1], s_t0))
            e("s_waitcnt vmcnt(0)")
            e("s_mov_b64 exec, 1")
            e("buffer_store_dword v%d, v%d, %s, s%d offen offset:128 sc1" % (t[0], t[1], srd(S_WS), s_cb))
            e("s_mov_b64 exec, -1")
            e.label(lh)
        return XP

    e.l.insert(len(e.l) - 1, "    s_mov_b32 s%d, 0" % s_phi)
    main13(1); epi1(); stamp(e, 3, vStamp)
    main24(2); epi24(2); stamp(e, 7, vStamp)
    main13(3); epi3(); stamp(e, 11, vStamp)
    main24(4); XP = epi24(4); stamp(e, 15, vStamp)
    e("s_mov_b32 s%d, 1" % s_pair)
    e("s_add_u32 s%d, s%d, 0x%x" % (s_pb, s_pb, PAIRSZ))
    a_addr_linear(e, vA0, vA1)
    e("s_branch L_C_loop")
    e.label("L_C_final")
    e("s_movk_i32 s%d, 0x4000" % s_t1)
    e("buffer_store_dwordx4 %s, v%d, %s, 0 offen" % (vr(XP, 4), vOutA, srd(S_OUT)))
    e("buffer_store_dwordx4 %s, v%d, %s, s%d offen" % (vr(XP + 4, 4), vOutA, srd(S_OUT), s_t1))
    if cfg.stamps:
        e("s_waitcnt vmcnt(0)")
        stamp(e, 15, vStamp)
        stamp_flush(e, vStamp, t[1])
    e("s_endpgm")
    return e

class Stats:
    def __init__(self, e, va, ntile):
        self.e = e
        self.vA0, self.vA1, self.vAl = va.get(), va.get(), va.get()
        self.F = va.get(8 * ntile, 4)
        self.acc = va.get(4 * ntile)
        self.one = va.get()
        self.tw = [va.get() for _ in range(3)]
        self.t = [va.get(2, 2), va.get(2, 2)]
    def init_common(self, hidx_sgpr):
        e = self.e
        e("v_mov_b32 v%d, 0x3f803f80" % self.one)
        e("v_and_b32 v%d, 15, v0" % self.tw[2])
        e("s_lshl_b32 s%d, s%d, 4" % (s_t0, hidx_sgpr))
        e("v_add_u32 v%d, s%d, v%d" % (self.tw[1], s_t0, self.tw[2]))
        e("v_lshlrev_b32 v%d, 3, v%d" % (self.tw[0], self.tw[1]))
        e("v_add_u32 v%d, 0x%x, v%d" % (self.tw[0], ST_T, self.tw[0]))
        e("v_lshlrev_b32 v%d, 2, v%d" % (self.tw[1], self.tw[1]))
        e("v_add_u32 v%d, 0x%x, v%d" % (self.tw[1], ST_R, self.tw[1]))
    def addr(self, rowmajor, hidx_sgpr):
        e = self.e
        if rowmajor: a_addr_rowmajor(e, self.vA0, self.vA1, self.t[0], self.t[1])
        else: a_addr_linear(e, self.vA0, self.vA1)
        e("s_lshl_b32 s%d, s%d, 11" % (s_t0, hidx_sgpr))
        e("v_add_u32 v%d, s%d, v%d" % (self.vA0, s_t0, self.vA0))
        e("v_add_u32 v%d, s%d, v%d" % (self.vA1, s_t0, self.vA1))
    def addr_lin_keep(self, hidx_sgpr):
        e = self.e
        e("v_lshlrev_b32 v%d, 4, v0" % self.vAl)
        e("s_lshl_b32 s%d, s%d, 11" % (s_t0, hidx_sgpr))
        e("s_add_u32 s%d, s%d, 0x%x" % (s_t0, s_t0, ABASE))
        e("v_add_u32 v%d, s%d, v%d" % (self.vAl, s_t0, self.vAl))
    def reads(self, p, ch, halo_regs=None):
        e = self.e; ph = PH[p]
        slot = (ch % ph['nslot']) * ph['achunk']
        for kk in range(2):
            if p == 1: e("ds_read_b128 %s, v%d offset:%d" % (vr(self.F + 4 * kk, 4), self.vA1 if kk else self.vA0, slot + 2048))
            else: e("ds_read_b128 %s, v%d offset:%d" % (vr(self.F + 4 * kk, 4), self.vAl, slot + 1024 * kk))
        if halo_regs:
            for kk in range(2):
                e("ds_read_b128 %s, v%d offset:%d" % (vr(self.F + 8 + 4 * kk, 4), halo_regs[kk], slot))
    def zero(self, nt):
        for q in range(4 * nt): self.e("v_mov_b32 v%d, 0" % (self.acc + q))
    def accum(self, nt):
        e = self.e
        e("s_waitcnt lgkmcnt(0)")
        for ti in range(nt):
            for q in range(8):
                f = self.F + 8 * ti + q
                e("v_dot2c_f32_bf16 v%d, v%d, v%d" % (self.acc + 4 * ti + (q & 1), f, self.one))
                e("v_dot2c_f32_bf16 v%d, v%d, v%d" % (self.acc + 4 * ti + 2 + (q & 1), f, f))
    def finish(self, ti, scale, woff_tok, halo=False):
        e = self.e
        a = self.acc + 4 * ti
        u, z = self.t[0], self.t[1]
        e("s_nop 2")
        e("v_add_f32 v%d, v%d, v%d" % (a, a, a + 1))
        e("v_add_f32 v%d, v%d, v%d" % (a + 2, a + 2, a + 3))
        e("s_nop 1")
        e("v_permlane32_swap_b32 v%d, v%d" % (a, a + 2))
        e("s_nop 1")
        e("v_add_f32 v%d, v%d, v%d" % (a, a, a + 2))
        e("v_mov_b32 v%d, v%d" % (a + 1, a))
        e("s_nop 1")
        e("v_permlane16_swap_b32 v%d, v%d" % (a, a + 1))
        e("s_nop 1")
        e("v_add_f32 v%d, v%d, v%d" % (a, a, a + 1))
        e("v_mul_f32 v%d, 0x%x, v%d" % (a, f2u(1.0 / 512), a))
        e("v_mov_b32 v%d, v%d" % (a + 1, a))
        e("s_nop 1")
        e("v_permlane32_swap_b32 v%d, v%d" % (a, a + 1))
        e("s_nop 1")
        e("v_fma_f32 v%d, -v%d, v%d, v%d" % (a + 1, a, a, a + 1))
        e("v_max_f32 v%d, 0, v%d" % (a + 1, a + 1))
        e("v_add_f32 v%d, 0x%x, v%d" % (a + 1, f2u(1e-5), a + 1))
        e("v_rsq_f32 v%d, v%d" % (u, a + 1))
        e("s_nop 0")
        if scale != 1.0: e("v_mul_f32 v%d, 0x%x, v%d" % (u, f2u(scale), u))
        e("v_mul_f32 v%d, v%d, v%d" % (u + 1, u, a))
        if halo:
            e("v_lshlrev_b32 v%d, 3, v%d" % (z, self.tw[2]))
            e("v_lshlrev_b32 v%d, 2, v%d" % (z + 1, self.tw[2]))
            e("v_add_u32 v%d, 0x%x, v%d" % (z, ST_T, z))
            e("v_add_u32 v%d, 0x%x, v%d" % (z + 1, ST_R, z + 1))
            aT, aR = z, z + 1
        else:
            aT, aR = self.tw[0], self.tw[1]
        e("ds_write_b64 v%d, %s offset:%d" % (aT, vr(u, 2), 8 * woff_tok))
        e("ds_write_b32 v%d, v%d offset:%d" % (aR, u, 4 * woff_tok))
        e("ds_write_b32 v%d, v%d offset:%d" % (aR, u + 1, 4 * woff_tok + (ST_M - ST_R)))

def spin_guard(e, lab_loop, lab_done):
    e("s_add_u32 s%d, s%d, 1" % (s_spin, s_spin))
    e("s_cmp_lt_u32 s%d, %d" % (s_spin, cfg.spin_limit))
    e("s_cbranch_scc1 %s" % lab_loop)

def la_stream():
    e = Stream()
    va = VAlloc(1)
    t = [va.get() for _ in range(4)]
    vStamp = va.get()
    vP1 = [va.get() for _ in range(4)]
    vH, vLin, vPoll, vPollH, vD = [va.get() for _ in range(5)]
    vD2 = va.get(2, 2)
    st = Stats(e, va, 1)
    e.label("L_LA")
    if cfg.stamps: e("v_mov_b32 v%d, 0" % vStamp)
    e("s_mov_b32 s%d, 0" % s_spin)
    e("s_mov_b32 s%d, 0" % s_phi)
    e("v_lshrrev_b32 v%d, 3, v0" % t[0])
    e("v_and_b32 v%d, 7, v0" % t[1])
    e("v_xor_b32 v%d, v%d, v%d" % (t[1], t[1], t[0]))
    e("v_lshlrev_b32 v%d, 4, v%d" % (t[1], t[1]))
    e("v_lshl_add_u32 v%d, v%d, 10, v%d" % (t[0], t[0], t[1]))
    e("s_lshl_b32 s%d, s%d, 16" % (s_t0, s_c))
    e("s_lshl_b32 s%d, s%d, 15" % (s_t1, s_wv))
    e("s_add_u32 s%d, s%d, s%d" % (s_t1, s_t1, s_t0))
    e("v_add_u32 v%d, s%d, v%d" % (vP1[0], s_t1, t[0]))
    for n in range(1, 4): e("v_add_u32 v%d, %d, v%d" % (vP1[n], 7168 * n, vP1[0]))
    e("s_sub_u32 s%d, s%d, 0x4000" % (s_t0, s_t0))
    e("s_max_i32 s%d, s%d, 0" % (s_t0, s_t0))
    e("s_lshl_b32 s%d, s%d, 13" % (s_t1, s_wv))
    e("s_add_u32 s%d, s%d, s%d" % (s_t0, s_t0, s_t1))
    e("v_add_u32 v%d, s%d, v%d" % (vH, s_t0, t[0]))
    e("s_mov_b32 s%d, 0" % s_so)
    e("s_mov_b32 s%d, 0" % s_soh)
    e("s_movk_i32 s%d, 128" % s_step)
    e("s_movk_i32 s%d, 128" % s_steph)
    e("s_lshl_b32 s%d, s%d, 12" % (s_hb, s_wv))
    e("s_lshl_b32 s%d, s%d, 10" % (s_sc, s_wv))

    issued = []
    def issue(p, ch):
        ph = PH[p]
        slot = ABASE + (ch % ph['nslot']) * ph['achunk']
        if p == 1:
            e("s_add_u32 m0, s%d, 0x%x" % (s_hb, slot + 2048))
            e("s_nop 0")
            for n in range(4):
                e("buffer_load_dwordx4 v%d, %s, s%d offen offset:%d sc1 lds" % (vP1[n], srd(S_A), s_so, 1024 * n)); issued.append(ch)
            e("s_add_u32 m0, s%d, 0x%x" % (s_sc, slot))
            e("s_add_u32 s%d, s%d, s%d" % (s_so, s_so, s_step))
            e("buffer_load_dwordx4 v%d, %s, s%d offen sc1 lds" % (vH, srd(S_A), s_soh)); issued.append(ch)
            e("s_add_u32 s%d, s%d, s%d" % (s_soh, s_soh, s_steph))
        else:
            e("s_add_u32 m0, s%d, 0x%x" % (s_hb, slot))
            e("s_nop 0")
            half = (p == 4 and ch == ph['nch'] - 1)
            for n in range(4):
                if half and (n & 1): continue
                e("buffer_load_dwordx4 v%d, %s, s%d offen offset:%d sc1 lds" % (vLin, srd(S_WS), s_so, 1024 * n)); issued.append(ch)
            e("s_add_u32 s%d, s%d, 8192" % (s_so, s_so))

    first_mark = len(e.l)
    e("s_branch L_LA_p1go")
    e.label("L_LA_loop")

    def poll(vaddr):
        lp, ld = newlabel("poll"), newlabel("polld")
        e.label(lp)
        e("buffer_load_dword v%d, v%d, %s, 0 offen sc1" % (vD, vaddr, srd(S_WS)))
        e("s_waitcnt vmcnt(0)")
        e("v_cmp_le_u32 vcc, s%d, v%d" % (s_phi, vD))
        e("s_cmp_eq_u64 vcc, -1")
        e("s_cbranch_scc1 %s" % ld)
        spin_guard(e, lp, ld)
        e.label(ld)

    for p in (1, 2, 3, 4):
        ph = PH[p]; nch = ph['nch']
        e.comment("---- LA phase %d ----" % p)
        e("s_add_u32 s%d, s%d, 1" % (s_phi, s_phi))
        if p == 2: e("s_add_u32 s%d, s%d, 0x%x" % (s_so, s_pb, W_O))
        if p == 3: e("s_add_u32 s%d, s%d, 0x%x" % (s_so, s_pb, W_XA))
        if p == 4: e("s_add_u32 s%d, s%d, 0x%x" % (s_so, s_pb, W_H))
        poll(vPollH if p == 1 else vPoll)
        stamp(e, 4 * (p - 1), vStamp)
        if p == 1: e.label("L_LA_p1go")
        issued.clear()
        nxt = 0
        while nxt < min(nch, ph['nslot']): issue(p, nxt); nxt += 1
        if p == 1:
            ls = newlabel("noset")
            e("s_cmp_lg_u32 s%d, 0" % s_pair)
            e("s_cbranch_scc1 %s" % ls)
            st.init_common(s_wv)
            st.addr(True, s_wv)
            st.addr_lin_keep(s_wv)
            e("v_lshlrev_b32 v%d, 4, v0" % vLin)
            e("v_add_u32 v%d, s%d, v%d" % (vLin, s_hb, vLin))
            e("v_and_b32 v%d, 31, v0" % t[0])
            e("v_lshlrev_b32 v%d, 2, v%d" % (t[0], t[0]))
            e("v_add_u32 v%d, s%d, v%d" % (vPoll, s_cb, t[0]))
            e("s_mul_i32 s%d, s%d, 0x%x" % (s_t0, s_cprev, CS))
            e("s_add_u32 s%d, s%d, 128" % (s_t0, s_t0))
            e("v_and_b32 v%d, 15, v0" % t[0])
            e("v_lshlrev_b32 v%d, 2, v%d" % (t[0], t[0]))
            e("v_add_u32 v%d, s%d, v%d" % (t[0], s_t0, t[0]))
            e("v_cmp_gt_u32 vcc, 32, v0")
            e("s_nop 1")
            e("v_cndmask_b32 v%d, v%d, v%d, vcc" % (vPollH, t[0], vPoll))
            e.label(ls)
        stats = p in (1, 3)
        if stats: st.zero(1)
        landed = -1
        for i in range(nch + 1):
            if i < nch and landed < i:
                n = sum(1 for c_ in issued if c_ > i)
                if p == 1 and i == 5: n = 0
                e("s_waitcnt vmcnt(%d)" % n)
                landed = i if n else nch
            e.barrier()
            if i == 0: stamp(e, 4 * (p - 1) + 1, vStamp)
            if i < nch and stats: st.reads(p, i)
            if i >= 1 and nxt < nch: issue(p, nxt); nxt += 1
            if i < nch and stats: st.accum(1)
            if p == 1 and i == 5:
                lh, lp, ld = newlabel("nohs"), newlabel("hs"), newlabel("hsd")
                e("s_cmp_lg_u32 s%d, 0" % s_pair)
                e("s_cbranch_scc1 %s" % lh)
                e("s_lshl_b32 s%d, s%d, 3" % (s_t0, s_c))
                e("s_lshl_b32 s%d, s%d, 3" % (s_t1, s_cprev))
                e("v_mov_b32 v%d, s%d" % (t[0], s_t0))
                e("v_mov_b32 v%d, s%d" % (t[1], s_t1))
                e("v_cmp_gt_u32 vcc, 32, v0")
                e("s_nop 1")
                e("v_cndmask_b32 v%d, v%d, v%d, vcc" % (t[0], t[1], t[0]))
                e("v_mov_b32 v%d, 0x01010101" % t[2])
                e.label(lp)
                e("global_load_dwordx2 %s, v%d, s[%d:%d] sc1" % (vr(vD2, 2), t[0], S_DBG, S_DBG + 1))
                e("s_waitcnt vmcnt(0)")
                e("v_add_u32 v%d, v%d, v%d" % (t[1], vD2, vD2 + 1))
                e("v_mul_lo_u32 v%d, v%d, v%d" % (t[1], t[1], t[2]))
                e("v_lshrrev_b32 v%d, 24, v%d" % (t[1], t[1]))
                e("v_cmp_eq_u32 vcc, 8, v%d" % t[1])
                e("s_cmp_eq_u64 vcc, -1")
                e("s_cbranch_scc1 %s" % ld)
                spin_guard(e, lp, ld)
                e.label(ld)
                e("v_or_b32 v%d, v%d, v%d" % (t[1], vD2, vD2 + 1))
                e("v_and_b32 v%d, 0x08080808, v%d" % (t[1], t[1]))
                e("v_mov_b32 v%d, 0x%x" % (t[0], MODE_W))
                e("s_mov_b64 exec, 1")
                e("ds_write_b32 v%d, v%d" % (t[0], t[1]))
                e("s_mov_b64 exec, -1")
                e.label(lh)
            if stats and i == nch - 1:
                st.finish(0, LOG2E if p == 3 else 1.0, 16 if p == 1 else 0)
                e("s_waitcnt lgkmcnt(0)")
    e("s_cmp_lg_u32 s%d, 0" % s_pair)
    e("s_cbranch_scc1 L_LA_end")
    e("s_mov_b32 s%d, 1" % s_pair)
    e("s_add_u32 s%d, s%d, 0x%x" % (s_pb, s_pb, PAIRSZ))
    e("s_mov_b32 s%d, s%d" % (S_A, S_WS))
    e("s_mov_b32 s%d, s%d" % (S_A + 1, S_WS + 1))
    e("s_mov_b32 s%d, s%d" % (S_A + 2, S_WS + 2))
    for n in range(4): e("v_mov_b32 v%d, v%d" % (vP1[n], vLin))
    e("v_lshlrev_b32 v%d, 4, v0" % vH)
    e("v_add_u32 v%d, s%d, v%d" % (vH, s_sc, vH))
    e("s_add_u32 s%d, s%d, 0x%x" % (s_so, s_cb, W_X2))
    e("s_movk_i32 s%d, 0x2000" % s_step)
    e("s_mul_i32 s%d, s%d, 0x%x" % (s_soh, s_cprev, CS))
    e("s_add_u32 s%d, s%d, 0x%x" % (s_soh, s_soh, W_HALO))
    e("s_movk_i32 s%d, 0x800" % s_steph)
    st.addr(False, s_wv)
    e("s_branch L_LA_loop")
    e.label("L_LA_end")
    stamp_flush(e, vStamp, t[1])
    e("s_endpgm")
    e.vmax = va.n
    return e

def lb_stream():
    e = Stream()
    va = VAlloc(1)
    t = [va.get() for _ in range(4)]
    vW = {1: [va.get(), va.get()], 2: [va.get(), va.get()], 3: [va.get(), va.get()]}
    vW[4] = vW[2]
    vHA = [va.get(), va.get()]
    st = Stats(e, va, 2)
    stride = {1: 3072, 2: 1024, 3: 2752, 4: 1024}
    segoff = {1: 1024, 2: 0, 3: 128, 4: 0}
    jmul = {1: 128, 2: 128, 3: 384}
    sr = {1: S_WQ, 2: S_WO, 3: S_W1, 4: S_W2}
    e.label("L_LB")
    e("v_bfe_u32 v%d, v0, 3, 2" % t[0])
    e("v_lshrrev_b32 v%d, 5, v0" % t[1])
    e("v_lshl_add_u32 v%d, v%d, 3, v%d" % (t[0], t[1], t[0]))
    e("s_lshl_b32 s%d, s%d, 2" % (s_t0, s_wv))
    e("v_add_u32 v%d, s%d, v%d" % (t[0], s_t0, t[0]))
    e("v_lshrrev_b32 v%d, 4, v0" % t[1])
    e("v_lshlrev_b32 v%d, 1, v%d" % (t[1], t[1]))
    e("v_and_b32 v%d, 7, v0" % t[2])
    e("v_xor_b32 v%d, v%d, v%d" % (t[1], t[1], t[2]))
    e("v_lshlrev_b32 v%d, 4, v%d" % (t[1], t[1]))
    def mkaddr(m):
        e("v_mul_u32_u24 v%d, %d, v%d" % (vW[m][0], stride[m], t[0]))
        e("s_mul_i32 s%d, s%d, %d" % (s_t0, s_j, jmul[m]))
        e("v_add3_u32 v%d, v%d, v%d, s%d" % (vW[m][0], vW[m][0], t[1], s_t0))
        e("v_add_u32 v%d, %d, v%d" % (vW[m][1], 16 * stride[m] - 1024, vW[m][0]))
    mkaddr(1)
    e("s_lshl_b32 s%d, s%d, 11" % (s_hb, s_wv))

    def uinfo(u):
        u %= NU
        if u >= NU_REAL: return None
        for p in (4, 3, 2, 1):
            if u >= ubase[p]:
                q = u - ubase[p]
                return p, q // PH[p]['seg'], q % PH[p]['seg']
    issued = []
    def issue(u):
        inf = uinfo(u)
        if inf is None: return
        p, ks, s = inf
        e("s_add_u32 m0, s%d, 0x%x" % (s_hb, unit_lds(u)))
        e("s_mov_b32 s%d, 0x%x" % (s_so, ks * 32 * stride[p] + s * segoff[p]))
        e("buffer_load_dwordx4 v%d, %s, s%d offen lds" % (vW[p][0], srd(sr[p]), s_so)); issued.append(u)
        e("buffer_load_dwordx4 v%d, %s, s%d offen offset:1024 lds" % (vW[p][1], srd(sr[p]), s_so)); issued.append(u)
    for u in range(NUNIT): issue(u)
    nxt = NUNIT
    mkaddr(2); mkaddr(3)
    e("s_add_u32 s%d, s%d, 2" % (s_sc, s_wv))
    st.init_common(s_sc)
    a_addr_rowmajor(e, vHA[0], vHA[1], t[0], t[1])
    st.addr(True, s_sc)
    st.addr_lin_keep(s_sc)
    e.label("L_LB_loop")
    freed = 0
    landed = -1
    for p in (1, 2, 3, 4):
        ph = PH[p]; nch = ph['nch']
        e.comment("---- LB phase %d ----" % p)
        endu = ubase[p] + ph['nk'] * ph['seg'] + (1 if p == 4 else 0)
        def lastu(i): return min(ubase[p] + 2 * (i + 1) * ph['seg'], endu) - 1
        stats = p in (1, 3)
        nt = 2 if p == 1 else 1
        if stats: st.zero(nt)
        for i in range(nch + 1):
            if i < nch:
                need = lastu(i)
                if p == 4 and i == cfg.defer[4] - 1: need = endu - 1
                assert need < nxt, (p, i, need, nxt)
                if landed < need:
                    n = sum(1 for u in issued if u > need)
                    assert n <= 63
                    e("s_waitcnt vmcnt(%d)" % n)
                    landed = need
            e.barrier()
            if i >= 1: freed = lastu(i - 1) + 1
            if i < nch and stats: st.reads(p, i, vHA if p == 1 else None)
            lim = freed + NUNIT
            if i < cfg.defer[p]: lim = min(lim, endu)
            todo = list(range(nxt, lim))
            if todo:
                lk = None
                if todo[0] >= NU:
                    lk = newlabel("nopf")
                    e("s_cmp_lg_u32 s%d, 0" % s_pair)
                    e("s_cbranch_scc1 %s" % lk)
                else:
                    assert todo[-1] < NU
                for u in todo: issue(u)
                nxt = lim
                if lk: e.label(lk)
            if i < nch and stats: st.accum(nt)
            if stats and i == nch - 1:
                st.finish(0, LOG2E if p == 3 else 1.0, 16 if p == 1 else 0)
                if p == 1: st.finish(1, 1.0, 0, halo=True)
                e("s_waitcnt lgkmcnt(0)")
    assert nxt == NU + NUNIT, nxt
    e("s_cmp_lg_u32 s%d, 0" % s_pair)
    e("s_cbranch_scc1 L_end")
    e("s_mov_b32 s%d, 1" % s_pair)
    a_addr_linear(e, vHA[0], vHA[1])
    st.addr(False, s_sc)
    e("s_branch L_LB_loop")
    e.vmax = va.n
    return e

def build():
    uid[0] = 0
    pro = prologue(); c = compute_stream(); la = la_stream(); lb = lb_stream()
    assert c.nbar == la.nbar == lb.nbar, (c.nbar, la.nbar, lb.nbar)
    vmax = max(c.vmax, la.vmax, lb.vmax)
    ref = open("cdna_kernels/%s.s.ref" % NAME).read().split("\n")
    head = [l for l in ref if l.startswith(";") and "@launch" not in l and "Override" not in l and "grid=ceil" not in l]
    out = "\n".join(head) + "\n; @launch grid=(256,1,1) block=(512,1,1) lds=%d\n" % LDS_TOTAL
    out += '.amdgcn_target "amdgcn-amd-amdhsa--gfx950"\n.text\n.globl %s_kernel\n.p2align 8\n.type %s_kernel,@function\n%s_kernel:\n' % (NAME, NAME, NAME)
    out += pro.text() + "\n" + c.text() + "\n" + la.text() + "\n" + lb.text() + "\nL_end:\n    s_endpgm\n"
    nv = (vmax + 3) // 4 * 4
    out += """.section .rodata,"a"
.p2align 6
.amdhsa_kernel %s_kernel
  .amdhsa_next_free_vgpr %d
  .amdhsa_next_free_sgpr 96
  .amdhsa_accum_offset %d
  .amdhsa_group_segment_fixed_size 0
  .amdhsa_kernarg_size 80
  .amdhsa_user_sgpr_count 2
  .amdhsa_user_sgpr_kernarg_segment_ptr 1
  .amdhsa_system_sgpr_workgroup_id_x 1
.end_amdhsa_kernel
""" % (NAME, nv, nv)
    return out

if __name__ == "__main__":
    outp = "cdna_kernels/%s.s" % NAME
    for a in sys.argv[1:]:
        if a == "stamps": cfg.stamps = True
        elif a == "slow": cfg.force_slow = True
        elif a.startswith("out="): outp = a[4:]
    open(outp, "w").write(build())
    print("wrote", outp)
```
